```python
import torch

def _softmax(x, axis=-1):
    return torch.softmax(x, dim=axis)
def _gelu(x):
    return torch.nn.functional.gelu(x, approximate="tanh")
def _silu(x):
    return torch.nn.functional.silu(x)
def _sigmoid(x):
    return torch.sigmoid(x)
def _layernorm(x, axis=-1, eps=1e-5):
    m = x.mean(dim=axis, keepdim=True)
    v = x.var(dim=axis, keepdim=True, unbiased=False)
    return (x - m) / torch.sqrt(v + eps)
def _scatter_add(tgt, idx, src, axis=0):
    return tgt.clone().index_add_(axis, idx, src)
def _segment_sum(src, seg, n):
    out = torch.zeros((n,) + src.shape[1:], dtype=src.dtype)
    return out.index_add_(0, seg, src)
def _pad(x, pw):
    flat = tuple(v for pair in reversed(pw) for v in pair)
    return torch.nn.functional.pad(x, flat)

kernel_name = 'standalone__modern_conv_block_replknet__vision'

def setup_inputs():

    _w = (lambda a: (lambda t: t.to(torch.bfloat16) if t.is_floating_point() else t)(torch.as_tensor(a)))
    H = W = 256
    C = 384
    K = 1
    return {
        "x": _w((lambda *s: torch.randn(*s, dtype=torch.bfloat16) * 0.05)(1, H, W, C)),
        "dw_large": _w((lambda *s: torch.randn(*s, dtype=torch.bfloat16) * 0.4)(K, K, C) * (1.0 / K)),
        "dw_small": _w((lambda *s: torch.randn(*s, dtype=torch.bfloat16) * 0.4)(5, 5, C) * 0.2),
        "w1": _w((lambda *s: torch.randn(*s, dtype=torch.bfloat16) * 0.4)(C, 4 * C) * (C ** -0.5)),
        "w2": _w((lambda *s: torch.randn(*s, dtype=torch.bfloat16) * 0.1)(4 * C, C) * ((4 * C) ** -0.5)),
    }

def reference(x, dw_large, dw_small, w1, w2):
    B, H, W, C = x.shape
    Kl = dw_large.shape[0]
    pl = (Kl - 1) // 2
    xpl = _pad(x, ((0,0),(pl,pl),(pl,pl),(0,0)))
    out = torch.zeros_like(x)
    for i in range(Kl):
        for j in range(Kl):
            out = out + xpl[:, i:i+H, j:j+W, :] * dw_large[i, j][None, None, None, :]
    Ks = dw_small.shape[0]
    ps = (Ks - 1) // 2
    xps = _pad(x, ((0,0),(ps,ps),(ps,ps),(0,0)))
    for i in range(Ks):
        for j in range(Ks):
            out = out + xps[:, i:i+H, j:j+W, :] * dw_small[i, j][None, None, None, :]
    h = _layernorm(out, axis=-1)
    h = _gelu(torch.einsum('bhwc,ce->bhwe', h, w1))
    h = torch.einsum('bhwe,ec->bhwc', h, w2)
    return x + h
```

```python
import os, sys, numpy as np
from hiprun import *

def make_kernel(name, body, iters, nvgpr=256, nagpr=256, pre="", post="", lds_fill=0, block=256, pre_loop=""):
    t = []
    a = t.append
    a(".globl %s\n.p2align 8\n.type %s,@function\n%s:" % (name, name, name))
    a("s_load_dwordx4 s[4:7], s[0:1], 0")
    a("s_waitcnt lgkmcnt(0)")
    a("s_mov_b32 s8, s4\ns_mov_b32 s9, s5\ns_mov_b32 s10, 0x4000000\ns_mov_b32 s11, 0x20000")
    a("s_mov_b32 s12, s6\ns_mov_b32 s13, s7\ns_mov_b32 s14, 0x100000\ns_mov_b32 s15, 0x20000")
    a("v_lshlrev_b32 v1, 2, v0")
    a("s_lshl_b32 s16, s2, 12")
    a("v_add_u32 v1, s16, v1")
    off = 0
    for r in range(8, nvgpr):
        a("buffer_load_dword v%d, v1, s[8:11], 0 offen offset:%d" % (r, (r * 4) % 4096))
        if r % 32 == 0:
            a("s_waitcnt vmcnt(0)")
    a("s_waitcnt vmcnt(0)")
    for r in range(nagpr):
        a("v_accvgpr_write_b32 a%d, v%d" % (r, 8 + (r * 7) % (nvgpr - 8)))
    if lds_fill:
        a("v_lshlrev_b32 v2, 4, v0")
        a("s_mov_b32 s17, 0")
        a("L_fill_%s:" % name)
        a("v_add_u32 v3, s17, v2")
        a("ds_write_b128 v3, v[8:11]")
        a("s_add_u32 s17, s17, %d" % (block * 16))
        a("s_cmp_lt_u32 s17, %d" % lds_fill)
        a("s_cbranch_scc1 L_fill_%s" % name)
        a("s_waitcnt lgkmcnt(0)")
    a(pre)
    a("s_barrier")
    a("s_mov_b32 s20, %d" % iters)
    a("s_memtime s[24:25]")
    a("s_memrealtime s[26:27]")
    a("s_waitcnt lgkmcnt(0)")
    a(pre_loop)
    a(".p2align 6")
    a("L_loop_%s:" % name)
    a(body)
    a("s_sub_u32 s20, s20, 1")
    a("s_cmp_lg_u32 s20, 0")
    a("s_cbranch_scc1 L_loop_%s" % name)
    a("s_waitcnt vmcnt(0) lgkmcnt(0)")
    a("s_memtime s[28:29]")
    a("s_memrealtime s[30:31]")
    a("s_waitcnt lgkmcnt(0)")
    a(post)
    a("s_sub_u32 s28, s28, s24\ns_subb_u32 s29, s29, s25")
    a("s_sub_u32 s30, s30, s26\ns_subb_u32 s31, s31, s27")
    a("v_lshrrev_b32 v2, 6, v0")
    a("s_lshl_b32 s16, s2, 4")
    a("v_add_u32 v2, s16, v2")
    a("v_lshlrev_b32 v2, 4, v2")
    a("s_add_u32 s27, s26, s30")
    a("v_mov_b32 v4, s28\nv_mov_b32 v5, s30\nv_mov_b32 v6, s26\nv_mov_b32 v7, s27")
    a("v_and_b32 v3, 63, v0\nv_cmp_eq_u32 vcc, 0, v3")
    a("s_and_saveexec_b64 s[18:19], vcc")
    a("s_cbranch_execz L_end_%s" % name)
    a("buffer_store_dwordx4 v[4:7], v2, s[12:15], 0 offen")
    a("L_end_%s:" % name)
    a("s_endpgm")
    text = "\n".join(t)
    kd = """
.section .rodata,"a"
.p2align 6
.amdhsa_kernel %s
  .amdhsa_next_free_vgpr %d
  .amdhsa_next_free_sgpr 102
  .amdhsa_accum_offset %d
  .amdhsa_group_segment_fixed_size 0
  .amdhsa_kernarg_size 64
  .amdhsa_user_sgpr_count 2
  .amdhsa_user_sgpr_kernarg_segment_ptr 1
  .amdhsa_system_sgpr_workgroup_id_x 1
.end_amdhsa_kernel
.text
""" % (name, nvgpr + nagpr if nagpr else nvgpr, nvgpr)
    return text + kd


HEAD = '.amdgcn_target "amdgcn-amd-amdhsa--gfx950"\n.text\n'

class Bench:
    def __init__(self):
        self.kernels = []
        self.gpu = os.path.exists('/dev/kfd')
        if not self.gpu:
            return
        rng = np.random.default_rng(0)
        x = (rng.standard_normal(1 << 25).astype(np.float32))
        u = x.view(np.uint32)
        bf = ((u + 0x7fff + ((u >> 16) & 1)) >> 16).astype(np.uint16)
        self.inp = Buf.from_np(bf)
        self.out = Buf(1 << 20)
        self.flush = Buf(512 << 20)

    def add(self, name, body, iters, block=256, lds=0, grid=256, **kw):
        self.kernels.append((name, make_kernel(name, body, iters, block=block, **kw), iters, block, lds, grid))

    def build(self, fn="ub"):
        src = HEAD + "\n".join(k[1] for k in self.kernels)
        assemble(src, fn + ".co")
        if not self.gpu:
            print("assembled only"); sys.exit(0)
        self.mod = Module(fn + ".co")

    def run(self, reps=5, cold=True, per_iter_div=1, warm_launches=0, detail=False, warmup=3):
        tm = Timer()
        allres = {k[0]: [] for k in self.kernels}
        last = {}
        for r in range(-warmup, reps):
            for name, _, iters, block, lds, grid in self.kernels:
                self.out.memset(0)
                if cold:
                    self.flush.memset_async(r & 0xff)
                for w in range(warm_launches):
                    self.mod.launch(name, (grid, 1, 1), (block, 1, 1), [self.inp.ptr, self.out.ptr] + [0] * 6, lds)
                tm.start()
                self.mod.launch(name, (grid, 1, 1), (block, 1, 1), [self.inp.ptr, self.out.ptr] + [0] * 6, lds)
                us = tm.stop()
                sync()
                o = self.out.download(np.uint32).reshape(-1, 16, 4)[:grid, : block // 64]
                cyc = o[:, :, 0].astype(np.float64)
                rt = o[:, :, 1].astype(np.float64)
                st = o[:, :, 2].astype(np.int64); en = o[:, :, 3].astype(np.int64)
                span_wg = (en.max(axis=1) - st.min(axis=1)) / 100.0
                span_all = (en.max() - st.min()) / 100.0
                if r >= 0:
                    allres[name].append((us, np.median(cyc), cyc.max(), np.median(span_wg), np.median(cyc / np.maximum(rt, 1)) * 100, span_all))
                last[name] = cyc
        for name, _, iters, block, lds, grid in self.kernels:
            res = np.array(allres[name])
            m = np.median(res, axis=0)
            if detail:
                print("    per-wave mean cyc/instr:", " ".join("%.2f" % (last[name][:, w].mean() / iters / per_iter_div) for w in range(block // 64)))
            print("%-28s wall %8.1f us | cyc med %9.0f max %9.0f | per-iter %8.2f | wg-span %7.1f us | chip-span %7.1f (min %6.1f) | clk %6.0f MHz" % (name, m[0], m[1], m[2], m[1] / iters / per_iter_div, m[3], m[5], res[:, 5].min(), m[4]), flush=True)
```

```python
from ubench import *
from mix import *
b = Bench()
L = 160 * 1024
k1 = dict(block=256, lds=L, nvgpr=256, nagpr=256, pre=pre2, lds_fill=65536)
def gen(fa, fb, facc, n=96):
    out=[]
    for i in range(n):
        ai=fa(i); bi=fb(i); acc=facc(i)
        out.append("v_mfma_f32_16x16x32_bf16 v[%d:%d], a[%d:%d], a[%d:%d], v[%d:%d]" % (acc, acc+3, ai, ai+3, bi, bi+3, acc, acc+3))
    return "\n".join(out)
def A_plain(i): return 224 + ((i//8)%3)*8 + (i%2)*4
def A_serp(i):
    pt=(i%8)//2; f=i%2
    if pt%2: f=1-f
    return 224 + ((i//8)%3)*8 + f*4
def B_plain(i): return ((i//8)%6*2 + i%2)*16 + ((i%8)//2)*4
def B_serp(i):
    pt=(i%8)//2; f=i%2
    if pt%2: f=1-f
    return ((i//8)%6*2 + f)*16 + pt*4
acc=lambda i: 16 + ((i%8)//2)*4 + ((i//48)%2)*16
for r in range(2):
    b.add("plain%d"%r, gen(A_plain, B_plain, acc), 96, **k1)
    b.add("serp%d"%r, gen(A_serp, B_serp, acc), 96, **k1)
b.build("ub16")
b.run(reps=25, cold=False, per_iter_div=48)
```
